```python
import torch

def _softmax(x, axis=-1):
    return torch.softmax(x, dim=axis)
def _gelu(x):
    return torch.nn.functional.gelu(x, approximate="tanh")
def _silu(x):
    return torch.nn.functional.silu(x)
def _sigmoid(x):
    return torch.sigmoid(x)
def _layernorm(x, axis=-1, eps=1e-5):
    m = x.mean(dim=axis, keepdim=True)
    v = x.var(dim=axis, keepdim=True, unbiased=False)
    return (x - m) / torch.sqrt(v + eps)
def _scatter_add(tgt, idx, src, axis=0):
    return tgt.clone().index_add_(axis, idx, src)
def _segment_sum(src, seg, n):
    out = torch.zeros((n,) + src.shape[1:], dtype=src.dtype)
    return out.index_add_(0, seg, src)
def _pad(x, pw):
    flat = tuple(v for pair in reversed(pw) for v in pair)
    return torch.nn.functional.pad(x, flat)

kernel_name = 'concat_heads__softmax_full_mha__linear_attn_block__prompt'

def setup_inputs():

    _w = (lambda a: (lambda t: t.to(torch.bfloat16) if t.is_floating_point() else t)(torch.as_tensor(a)))
    def _A_setup():
        B, S, D = 1, 2048, 448
        return {
            "x": _w((lambda *s: torch.randn(*s, dtype=torch.bfloat16) * 0.2)(B, S, D)),
            "wqkv": _w((lambda *s: torch.randn(*s, dtype=torch.bfloat16) * 0.2)(D, 3 * D)),
            "wo": _w((lambda *s: torch.randn(*s, dtype=torch.bfloat16) * 0.05)(D, D)),
        }
    _A_in = _A_setup()

    def _B_setup():
        B, S, D = 1, 2048, 448
        return {
            "x": _w((lambda *s: torch.randn(*s, dtype=torch.bfloat16) * 0.05)(B, S, D)),
            "wqkv": _w((lambda *s: torch.randn(*s, dtype=torch.bfloat16) * 1.6)(D, 3 * D)),
            "wo": _w((lambda *s: torch.randn(*s, dtype=torch.bfloat16) * 0.05)(D, D)),
        }
    _B_in = _B_setup()

    return {
        "A_x": _A_in["x"],
        "A_wqkv": _A_in["wqkv"],
        "A_wo": _A_in["wo"],
        "B_x": _B_in["x"],
        "B_wqkv": _B_in["wqkv"],
        "B_wo": _B_in["wo"],
    }

def reference(A_x, A_wqkv, A_wo, B_x, B_wqkv, B_wo):
    def _A_ref(x, wqkv, wo):
        B, S, D = x.shape
        H = 16; Dh = D // H
        qkv = (lambda x, *d: x.permute(*d))((x @ wqkv).reshape(B, S, 3, H, Dh), 2, 0, 3, 1, 4)
        q, k, v = qkv[0], qkv[1], qkv[2]
        scale = Dh ** -0.5
        scores = torch.einsum("bhqd,bhkd->bhqk", q, k) * scale
        p = _softmax(scores, axis=-1)
        o = torch.einsum("bhqk,bhkd->bhqd", p, v)
        return (lambda x, *d: x.permute(*d))(o, 0, 2, 1, 3).reshape(B, S, D) @ wo

    def _B_ref(x, wqkv, wo):
        B, S, D = x.shape
        H = 16; Dh = D // H
        qkv = (lambda x, *d: x.permute(*d))((x @ wqkv).reshape(B, S, 3, H, Dh), 2, 0, 3, 1, 4)
        q, k, v = qkv[0], qkv[1], qkv[2]
        phi = lambda t: torch.where(t > 0, t + 1, torch.exp(t)) + 1e-6
        pq, pk = phi(q), phi(k)
        kv = torch.einsum("bhsd,bhse->bhde", pk, v)
        z = torch.einsum("bhsd->bhd", pk)
        num = torch.einsum("bhqd,bhde->bhqe", pq, kv)
        den = torch.einsum("bhqd,bhd->bhq", pq, z)[..., None] + 1e-6
        o = num / den
        return (lambda x, *d: x.permute(*d))(o, 0, 2, 1, 3).reshape(B, S, D) @ wo

    a = _A_ref(A_x, A_wqkv, A_wo)
    b = _B_ref(B_x, B_wqkv, B_wo)
    return torch.concatenate([a, b], axis=-1)
```

```python
import re

TRANS = ("v_exp_", "v_log_", "v_rcp_", "v_rsq_", "v_sqrt_", "v_sin_", "v_cos_")

def regs_of(tok):
    tok = tok.strip()
    tok = tok.lstrip("-")
    if tok.startswith("|") and tok.endswith("|"): tok = tok[1:-1]
    m = re.fullmatch(r"abs\((.*)\)", tok)
    if m: tok = m.group(1)
    m = re.fullmatch(r"([vas])(\d+)", tok)
    if m: return {(m.group(1), int(m.group(2)))}
    m = re.fullmatch(r"([vas])\[(\d+):(\d+)\]", tok)
    if m: return {(m.group(1), i) for i in range(int(m.group(2)), int(m.group(3)) + 1)}
    if tok == "vcc": return {("s", "vcc_lo"), ("s", "vcc_hi")}
    if tok in ("vcc_lo", "vcc_hi"): return {("s", tok)}
    if tok == "exec": return {("s", "exec")}
    if tok == "m0": return {("s", "m0")}
    return set()

class Ins:
    def __init__(self, text):
        self.text = text
        t = text.split(";")[0].strip()
        parts = t.split(None, 1)
        self.op = parts[0]
        ops = []
        if len(parts) > 1:
            ops = [x.strip() for x in parts[1].split(",")]
            if ops:
                last = ops[-1].split()
                ops[-1] = last[0] if last else ""
                self.mods = last[1:]
        self.ops = ops
        op = self.op
        self.is_mfma = op.startswith("v_mfma")
        self.is_valu = op.startswith("v_") and not self.is_mfma
        self.is_trans = op.startswith(TRANS)
        self.is_vmem = op.startswith(("buffer_", "global_"))
        self.is_ds = op.startswith("ds_")
        self.is_salu = op.startswith("s_")
        self.w = set(); self.r = set()
        self.srcA = set(); self.srcC = set()
        R = [regs_of(o) for o in ops]
        if self.is_mfma:
            self.w = R[0]; self.srcA = R[1] | R[2]; self.srcC = R[3]; self.r = self.srcA | self.srcC
            self.passes = 8 if "32x32" in op else 4
        elif self.is_valu:
            if op.startswith("v_cmp"):
                self.w = R[0]; self.r = set().union(*R[1:])
                if op.startswith("v_cmpx"): self.w |= {("s", "exec")}
            elif op.startswith("v_permlane") and "swap" in op:
                self.w = R[0] | R[1]; self.r = R[0] | R[1]
            elif op.startswith(("v_add_co", "v_sub_co", "v_addc_co", "v_subb_co")):
                self.w = R[0] | R[1]; self.r = set().union(*R[2:])
            else:
                self.w = R[0]; self.r = set().union(*R[1:]) if len(R) > 1 else set()
                if op.startswith(("v_fmac", "v_pk_fmac", "v_dot2c")) or "UNUSED_PRESERVE" in text: self.r |= R[0]
                if op.startswith("v_cndmask") and len(ops) == 3: self.r |= regs_of("vcc")
        elif self.is_vmem:
            lds = " lds" in (" " + t.split(",")[-1])
            if "store" in op or ("atomic" in op):
                self.r = set().union(*R)
                if "atomic" in op and "sc0" in t: self.w = R[0]
            elif lds:
                self.r = set().union(*R) | {("s", "m0")}
            else:
                self.w = R[0]; self.r = set().union(*R[1:])
            self.lds = lds
            self.wide_store = "store" in op and ("x3" in op or "x4" in op)
            if self.wide_store:
                self.sdata = R[0] if op.startswith("buffer_") else R[1]
        elif self.is_ds:
            if op.startswith(("ds_write", "ds_add", "ds_max", "ds_or")):
                self.r = set().union(*R)
            else:
                self.w = R[0]; self.r = set().union(*R[1:])
        elif self.is_salu:
            if op.startswith(("s_cmp", "s_cbranch", "s_branch", "s_waitcnt", "s_barrier", "s_nop", "s_endpgm", "s_setprio", "s_sleep")):
                self.r = set().union(*R) if R else set()
            else:
                self.w = R[0] if R else set(); self.r = set().union(*R[1:]) if len(R) > 1 else set()
                if "saveexec" in op: self.w |= {("s", "exec")}
        self.states = 1
        if op == "s_nop": self.states = int(ops[0], 0) + 1

def vregs(s): return {x for x in s if x[0] in "va"}
def sregs(s): return {x for x in s if x[0] == "s"}

def need(prod, cons):
    n = 0
    if prod.is_valu:
        pv = vregs(prod.w); ps = sregs(prod.w)
        if cons.is_mfma and (pv & cons.r): n = max(n, 2)
        if cons.op.startswith("v_permlane") and (pv & cons.r): n = max(n, 2)
        if cons.op.startswith(("v_readlane", "v_readfirstlane")) and (pv & cons.r): n = max(n, 1)
        if "dpp" in cons.text and cons.is_valu and (pv & cons.r): n = max(n, 2)
        if prod.is_trans and cons.is_valu and not cons.is_trans and (pv & cons.r): n = max(n, 1)
        if prod.is_trans and cons.is_trans and (pv & cons.r): n = max(n, 1)
        if ("sdwa" in prod.text or "op_sel" in prod.text) and cons.is_valu and (pv & (cons.r | cons.w)): n = max(n, 1)
        if ps:
            if cons.is_valu and (ps & cons.r): n = max(n, 4 if cons.op.startswith(("v_readlane", "v_writelane")) else 2)
            if cons.is_vmem and (ps & cons.r): n = max(n, 5)
            if cons.is_salu and (ps & cons.r): n = max(n, 1)
            if ("s", "exec") in ps and (cons.is_mfma or cons.is_valu): n = max(n, 5)
    if prod.is_salu and ("s", "m0") in prod.w and cons.is_vmem and getattr(cons, "lds", False): n = max(n, 1)
    if prod.is_vmem and getattr(prod, "wide_store", False):
        if (cons.is_valu or cons.is_mfma) and (prod.sdata & cons.w): n = max(n, 2)
        elif (cons.is_vmem or cons.is_ds) and (prod.sdata & cons.w): n = max(n, 1)
    if prod.is_mfma:
        big = {8: 12, 4: 8}[prod.passes]
        ovl = {8: 10, 4: 6}[prod.passes]
        war = {8: 7, 4: 3}[prod.passes]
        if cons.is_mfma:
            if prod.w & cons.srcA: n = max(n, big)
            if prod.w & cons.srcC and not (prod.w == cons.srcC and prod.passes == cons.passes): n = max(n, ovl)
            if prod.w & cons.w and not (prod.w == cons.srcC): n = max(n, ovl)
        else:
            if prod.w & (cons.r | cons.w): n = max(n, big)
            if cons.is_valu and (prod.srcC & cons.w): n = max(n, war)
            if (cons.is_ds or cons.is_vmem) and (prod.srcC & cons.w): n = max(n, war)
    return n

class Asm:
    def __init__(self):
        self.lines = []
        self.hist = []
        self.nops = 0
    def raw(self, s):
        self.lines.append(s)
    def label(self, name, reset=False):
        self.lines.append(name + ":")
        if reset: self.hist = []
    def barrier_hist(self):
        self.hist = []
    def __call__(self, text):
        for ln in text.split("\n"):
            ln = ln.strip()
            if not ln: continue
            if ln.startswith(";"):
                self.lines.append("    " + ln); continue
            if ln.endswith(":") or ln.startswith("."):
                self.lines.append(ln); continue
            ins = Ins(ln)
            dist = 0; req = 0
            for p in reversed(self.hist):
                n = need(p, ins)
                if n - dist > req: req = n - dist
                dist += p.states
                if dist >= 20: break
            if req > 0:
                self.nops += req
                nop = Ins(f"s_nop {req-1}")
                self.lines.append(f"    s_nop {req-1}")
                self.hist.append(nop)
            self.lines.append("    " + ln)
            self.hist.append(ins)
            if len(self.hist) > 40: self.hist = self.hist[-40:]
    def text(self):
        return "\n".join(self.lines) + "\n"
```

```python
import sys
from asmdsl import Asm

NAME = "concat_heads__softmax_full_mha__linear_attn_block__prompt"
WS_Q   = 0x000000
WS_KV  = 0x200000
WS_PQ  = 0x600000
WS_OA  = 0x800000
WS_KVP = 0xA00000
WS_KVF = 0xC00000
WS_SIZE = 0x1000000
LOG2E = 0x3FB8AA3B
import struct
def f2u(x): return struct.unpack("<I", struct.pack("<f", x))[0]
QSCALE = f2u((28 ** -0.5) * 1.4426950408889634)
EPS = f2u(1e-6)

def srd(a, d, lo, hi, size):
    a(f"s_mov_b32 s{d}, s{lo}\ns_mov_b32 s{d+1}, s{hi}\ns_mov_b32 s{d+2}, {size}\ns_mov_b32 s{d+3}, 0x20000")

def mfma32(d, A, B, C):
    c = f"v[{C}:{C+15}]" if C is not None else "0"
    return f"v_mfma_f32_32x32x16_bf16 v[{d}:{d+15}], v[{A}:{A+3}], v[{B}:{B+3}], {c}"
def mfma16(d, A, B, C):
    c = f"v[{C}:{C+3}]" if C is not None else "0"
    return f"v_mfma_f32_16x16x32_bf16 v[{d}:{d+3}], v[{A}:{A+3}], v[{B}:{B+3}], {c}"

def kstart(a, name):
    a.raw(f".globl {name}\n.p2align 8\n.type {name},@function\n{name}:")
    a.hist = []

def kd(name, nv=256):
    return f""".section .rodata,"a"
.p2align 6
.amdhsa_kernel {name}
  .amdhsa_next_free_vgpr {nv}
  .amdhsa_next_free_sgpr 96
  .amdhsa_accum_offset {nv}
  .amdhsa_group_segment_fixed_size 0
  .amdhsa_kernarg_size 72
  .amdhsa_user_sgpr_count 2
  .amdhsa_user_sgpr_kernarg_segment_ptr 1
  .amdhsa_system_sgpr_workgroup_id_x 1
.end_amdhsa_kernel
.text
"""

def k1(a):
    kstart(a, "qkv_kernel")
    a("""s_cmp_ge_u32 s2, 256
    s_cbranch_scc1 K1_END
    s_load_dwordx4 s[4:7], s[0:1], 0
    s_load_dwordx4 s[32:35], s[0:1], 24
    s_load_dwordx2 s[28:29], s[0:1], 64
    v_lshrrev_b32 v1, 6, v0
    v_and_b32 v2, 63, v0
    s_and_b32 s40, s2, 7
    s_lshr_b32 s41, s2, 3
    v_readfirstlane_b32 s19, v1
    s_lshr_b32 s16, s40, 2
    s_and_b32 s17, s40, 3
    s_and_b32 s44, s41, 3
    s_lshl_b32 s17, s17, 2
    s_add_u32 s17, s17, s44
    s_lshr_b32 s18, s41, 2
    s_and_b32 s20, s18, 3
    s_cmp_ge_u32 s19, 4
    s_cbranch_scc1 K1_LOADER""")
    a("""s_and_b32 s21, s19, 1
    s_lshr_b32 s22, s19, 1
    v_and_b32 v3, 31, v2
    v_lshrrev_b32 v4, 5, v2
    v_lshrrev_b32 v5, 1, v3
    v_and_b32 v5, 7, v5
    s_lshl_b32 s23, s21, 13
    v_lshlrev_b32 v6, 7, v3
    v_add_u32 v6, s23, v6""")
    for ks in range(4):
        a(f"""v_add_u32 v7, {2*ks}, v4
        v_xor_b32 v7, v7, v5
        v_lshl_add_u32 v{10+ks}, v7, 4, v6""")
    a("""v_lshrrev_b32 v5, 4, v2
    v_and_b32 v5, 1, v5
    v_and_b32 v6, 3, v2
    v_lshl_add_u32 v6, v5, 2, v6
    s_mul_i32 s23, s22, 7
    v_add_u32 v6, s23, v6
    v_lshrrev_b32 v7, 2, v2
    v_and_b32 v7, 3, v7
    v_lshrrev_b32 v8, 1, v6
    v_subrev_u32 v8, s20, v8
    v_lshrrev_b32 v9, 1, v7
    v_lshl_add_u32 v8, v9, 2, v8
    v_and_b32 v8, 7, v8
    v_and_b32 v6, 1, v6
    v_lshlrev_b32 v6, 3, v6
    v_lshl_add_u32 v6, v8, 4, v6
    v_lshl_add_u32 v7, v4, 3, v7
    v_lshl_add_u32 v6, v7, 7, v6
    v_add_u32 v14, 0x10000, v6
    v_add_u32 v15, 0x1c000, v6""")
    a(f"""s_cmp_eq_u32 s16, 1
    s_cselect_b32 s23, {EPS}, 0""")
    ACC = 160
    def acc(rt, part): return ACC + 16 * (3 * rt + part)
    for rt in range(2):
        for part in range(3):
            for r in range(16):
                a(f"v_mov_b32 v{acc(rt,part)+r}, {'s23' if part < 2 else '0'}")
    a("s_waitcnt lgkmcnt(0)")
    srd(a, 12, 28, 29, WS_SIZE)
    a("""s_cmp_eq_u32 s16, 1
    s_cbranch_scc1 K1_B""")
    def XF(b, rt): return 64 + 20 * b + 4 * rt
    def WF(b, p): return 72 + 20 * b + 4 * p
    def reads(n):
        s, ks = divmod(n, 4); slot = s % 4; b = n & 1
        L = []
        for rt in range(2):
            L.append(f"ds_read_b128 v[{XF(b,rt)}:{XF(b,rt)+3}], v{10+ks} offset:{slot*16384 + rt*4096}")
        for p in range(3):
            for rd in range(2):
                d = WF(b, p) + 2 * rd
                L.append(f"ds_read_b64_tr_b16 v[{d}:{d+1}], v{14 + (slot>>1)} offset:{(slot&1)*24576 + p*8192 + ks*2048 + rd*512}")
        return L
    def mainloop(isB):
        a("s_barrier")
        for x in reads(0): a(x)
        for n in range(28):
            b = n & 1
            a("s_waitcnt lgkmcnt(0)")
            nxt = []
            if n + 1 < 28:
                if (n + 1) % 4 == 0: a("s_barrier")
                nxt = reads(n + 1)
            ms = []
            for p in range(3):
                for rt in range(2):
                    tok_lane = (p == 0) or (p == 1 and not isB)
                    A, B = (WF(b, p), XF(b, rt)) if tok_lane else (XF(b, rt), WF(b, p))
                    ms.append(mfma32(acc(rt, p), A, B, acc(rt, p)))
            for i, m in enumerate(ms):
                a(m)
                for x in nxt[2*i:2*i+2]: a(x)
    P = 64
    T = 112
    def cvt_tile(dst, src):
        for i in range(8): a(f"v_cvt_pk_bf16_f32 v{dst+i}, v{src+2*i}, v{src+2*i+1}")
    mainloop(False)
    a(f"""; epilogue A
    s_lshl_b32 s24, s18, 1
    s_add_u32 s24, s24, s22          ; head
    s_lshl_b32 s25, s17, 2
    s_lshl_b32 s26, s21, 1
    s_add_u32 s25, s25, s26
    s_lshl_b32 s24, s24, 6
    s_add_u32 s24, s24, s25          ; head*64+tile
    s_lshl_b32 s25, s24, 11          ; Q offset
    s_lshl_b32 s26, s24, 12
    s_add_u32 s26, s26, {WS_KV}
    s_mov_b32 s30, {QSCALE}
    s_mov_b32 s31, {QSCALE}
    v_lshlrev_b32 v1, 4, v2
    v_cmp_eq_u32 vcc, 28, v3
    v_mov_b32 v5, 0x3f803f80
    v_cndmask_b32 v5, 0, v5, vcc""")
    for rt in range(2):
        V = acc(rt, 2); pv = P + 8 * rt
        cvt_tile(pv, V)
        a("s_mov_b32 exec_lo, 0xf0000000\ns_mov_b32 exec_hi, 0xf0000000")
        for i in range(8): a(f"v_mov_b32 v{pv+i}, v5")
        a("s_mov_b64 exec, -1")
        a(f"s_add_u32 s27, s26, {rt*4096}")
        a(f"buffer_store_dwordx4 v[{pv}:{pv+3}], v1, s[12:15], s27 offen offset:2048")
        a(f"buffer_store_dwordx4 v[{pv+4}:{pv+7}], v1, s[12:15], s27 offen offset:3072")
    for rt in range(2):
        Q = acc(rt, 0); K = acc(rt, 1); pq = P + 16 + 16 * rt; pk = pq + 8
        for i in range(8): a(f"v_pk_mul_f32 v[{Q+2*i}:{Q+2*i+1}], v[{Q+2*i}:{Q+2*i+1}], s[30:31]")
        a(f"v_mul_f32 v{T}, v{Q}, v{K}")
        a(f"v_mul_f32 v{T+1}, v{Q+1}, v{K+1}")
        for i in range(2, 12): a(f"v_fmac_f32 v{T+(i&1)}, v{Q+i}, v{K+i}")
        a("s_mov_b32 exec_hi, 0")
        for i in range(12, 16): a(f"v_fmac_f32 v{T+(i&1)}, v{Q+i}, v{K+i}")
        a("s_mov_b32 exec_hi, -1")
        a(f"v_add_f32 v{T}, v{T}, v{T+1}")
        cvt_tile(pk, K)
        a(f"v_mov_b32 v{T+1}, v{T}")
        cvt_tile(pq, Q)
        a(f"v_permlane32_swap_b32 v{T}, v{T+1}")
        a(f"v_add_f32 v{T}, v{T}, v{T+1}")
        a("s_mov_b32 exec_lo, 0")
        a(f"v_cvt_pk_bf16_f32 v{pq+6}, -v{T}, 0")
        a(f"v_mov_b32 v{pq+7}, 0")
        a(f"v_mov_b32 v{pk+6}, 0x3f80")
        a(f"v_mov_b32 v{pk+7}, 0")
        a("s_mov_b32 exec_lo, -1")
        a(f"s_add_u32 s27, s26, {rt*4096}")
        a(f"buffer_store_dwordx4 v[{pk}:{pk+3}], v1, s[12:15], s27 offen")
        a(f"buffer_store_dwordx4 v[{pk+4}:{pk+7}], v1, s[12:15], s27 offen offset:1024")
        a(f"buffer_store_dwordx4 v[{pq}:{pq+3}], v1, s[12:15], s25 offen offset:{rt*2048}")
        a(f"buffer_store_dwordx4 v[{pq+4}:{pq+7}], v1, s[12:15], s25 offen offset:{rt*2048+1024}")
    a("s_endpgm")
    a.label("K1_B", reset=True)
    mainloop(True)
    a(f"""; epilogue B
    s_lshl_b32 s24, s18, 1
    s_add_u32 s24, s24, s22          ; head
    s_mov_b32 s30, {LOG2E}
    s_mov_b32 s31, {LOG2E}
    s_mov_b32 s36, {EPS}
    s_lshl_b32 s25, s24, 5
    s_lshl_b32 s26, s17, 1
    s_add_u32 s25, s25, s26
    s_add_u32 s25, s25, s21
    s_lshl_b32 s25, s25, 12
    s_add_u32 s25, s25, {WS_KVP}
    s_lshl_b32 s26, s17, 3
    s_lshl_b32 s27, s21, 2
    s_add_u32 s26, s26, s27
    s_lshl_b32 s26, s26, 4
    s_add_u32 s26, s26, s24
    s_lshl_b32 s26, s26, 10
    s_add_u32 s26, s26, {WS_PQ}
    v_lshlrev_b32 v1, 4, v2
    v_and_b32 v5, 15, v2
    v_lshlrev_b32 v5, 4, v5
    v_lshl_add_u32 v5, v4, 8, v5
    v_lshrrev_b32 v6, 4, v3
    v_lshl_add_u32 v5, v6, 14, v5""")
    def phi(src, dst):
        for i in range(8): a(f"v_pk_mul_f32 v[{T+2*i}:{T+2*i+1}], v[{src+2*i}:{src+2*i+1}], s[30:31]")
        for i in range(16): a(f"v_exp_f32 v{T+i}, v{T+i} clamp")
        for i in range(16): a(f"v_max_f32 v{src+i}, s36, v{src+i}")
        for i in range(8): a(f"v_pk_add_f32 v[{src+2*i}:{src+2*i+1}], v[{src+2*i}:{src+2*i+1}], v[{T+2*i}:{T+2*i+1}]")
        cvt_tile(dst, src)
    KVA = 144
    for rt in range(2):
        pk = P + 16 * rt; pv = pk + 8
        cvt_tile(pv, acc(rt, 2))
        phi(acc(rt, 1), pk)
        a("s_mov_b32 exec_lo, 0xf0000000\ns_mov_b32 exec_hi, 0xf0000000")
        for i in range(8): a(f"v_mov_b32 v{pv+i}, 0x3f803f80")
        for i in range(8): a(f"v_mov_b32 v{pk+i}, 0")
        a("s_mov_b64 exec, -1")
        a(mfma32(KVA, pk, pv, None if rt == 0 else KVA))
        a(mfma32(KVA, pk + 4, pv + 4, KVA))
    for rt in range(2):
        pq = P + 32 + 8 * rt
        phi(acc(rt, 0), pq)
        a("s_mov_b32 exec_lo, 0")
        a(f"v_mov_b32 v{pq+6}, 0\nv_mov_b32 v{pq+7}, 0")
        a("s_mov_b32 exec_lo, -1")
        a(f"s_add_u32 s27, s26, {rt*32768}")
        a(f"buffer_store_dwordx4 v[{pq}:{pq+3}], v5, s[12:15], s27 offen")
        a(f"buffer_store_dwordx4 v[{pq+4}:{pq+7}], v5, s[12:15], s27 offen offset:512")
        if rt == 0:
            for rq in range(4):
                a(f"buffer_store_dwordx4 v[{KVA+4*rq}:{KVA+4*rq+3}], v1, s[12:15], s25 offen offset:{rq*1024}")
    a("s_endpgm")
    a.label("K1_LOADER", reset=True)
    a("""s_sub_u32 s21, s19, 4
    v_lshrrev_b32 v3, 3, v2
    v_and_b32 v4, 7, v2
    v_lshrrev_b32 v5, 4, v2
    v_xor_b32 v6, v4, v5
    v_mul_u32_u24 v7, 896, v3
    v_lshl_add_u32 v10, v6, 4, v7
    v_xor_b32 v11, 64, v10
    v_and_b32 v5, 1, v5
    v_lshlrev_b32 v5, 2, v5
    v_add_u32 v6, s20, v4
    v_sub_u32 v6, v6, v5
    v_and_b32 v6, 7, v6
    s_cmp_eq_u32 s20, 3
    s_cselect_b32 s22, 0, 6
    v_mov_b32 v8, s22
    v_cmp_eq_u32 vcc, 7, v6
    v_mul_u32_u24 v7, 2688, v3
    v_cndmask_b32 v6, v6, v8, vcc
    v_lshl_add_u32 v12, v6, 4, v7
    s_lshl_b32 s23, s44, 1
    s_add_u32 s23, s23, s18
    s_cmp_ge_u32 s23, 7
    s_cselect_b32 s24, 7, 0
    s_sub_u32 s23, s23, s24
    s_lshl_b32 s24, s17, 2
    s_add_u32 s24, s24, s21
    s_mul_i32 s24, s24, 28672
    s_mul_i32 s25, s21, 43008
    s_mul_i32 s26, s18, 112
    s_add_u32 s25, s25, s26
    s_lshl_b32 s36, s21, 12
    s_lshl_b32 s37, s21, 11
    s_add_u32 s37, s37, 0x10000
    s_waitcnt lgkmcnt(0)
    s_cmp_eq_u32 s16, 1
    s_cselect_b32 s4, s32, s4
    s_cselect_b32 s5, s33, s5
    s_cselect_b32 s8, s34, s6
    s_cselect_b32 s9, s35, s7
    s_mov_b32 s6, 1835008
    s_mov_b32 s7, 0x20000
    s_mov_b32 s10, 1204224
    s_mov_b32 s11, 0x20000""")
    def stage(s):
        slot = s % 4
        a("""s_lshl_b32 s26, s23, 7
        s_add_u32 s26, s26, s24
        s_mul_i32 s27, s23, 172032
        s_add_u32 s27, s27, s25
        s_add_u32 s23, s23, 1
        s_cmp_eq_u32 s23, 7
        s_cselect_b32 s23, 0, s23""")
        for i in range(4):
            a(f"s_add_u32 m0, s36, {slot*16384 + i*1024}")
            if i: a(f"s_add_u32 s26, s26, 7168")
            a(f"buffer_load_dwordx4 v{10+(i&1)}, s[4:7], s26 offen lds")
        for p in range(3):
            for t in range(2):
                a(f"s_add_u32 m0, s37, {slot*24576 + p*8192 + t*1024}")
                a(f"s_add_u32 s30, s27, {p*896 + t*21504}")
                a(f"buffer_load_dwordx4 v12, s[8:11], s30 offen lds")
    for s in range(4): stage(s)
    waits = [30, 20, 20, 20, 20, 10, 0]
    for s in range(7):
        a(f"s_waitcnt vmcnt({waits[s]})\ns_barrier")
        if 1 <= s <= 3: stage(s + 3)
    a.label("K1_END")
    a("s_endpgm")
    a.raw(kd("qkv_kernel"))

O_, Q_, KV_, S_, P_ = 192, 160, 96, 64, 48
def k2(a):
    kstart(a, "attn_kernel")
    a("""s_cmp_ge_u32 s2, 256
    s_cbranch_scc1 K2_END
    s_load_dwordx2 s[4:5], s[0:1], 64
    v_lshrrev_b32 v1, 6, v0
    v_and_b32 v2, 63, v0
    s_and_b32 s16, s2, 15
    v_readfirstlane_b32 s19, v1
    s_lshr_b32 s17, s2, 4
    v_lshlrev_b32 v1, 4, v2
    s_cmp_gt_u32 s19, 4
    s_cbranch_scc1 K2_END
    s_cmp_eq_u32 s19, 4
    s_cbranch_scc1 K2_KVRED""")
    a(f"""s_lshl_b32 s20, s16, 6
    s_lshl_b32 s21, s19, 4
    s_add_u32 s21, s20, s21
    s_lshl_b32 s21, s21, 12
    s_add_u32 s21, s21, {WS_KV}
    s_add_u32 s10, s21, 0x10000
    s_mov_b32 s11, 0x20000
    s_lshl_b32 s22, s17, 2
    s_add_u32 s20, s20, s22""")
    for j in range(4):
        a(f"""s_add_u32 s22, s19, {j+1}
        s_and_b32 s22, s22, 3
        s_add_u32 s22, s22, s20
        s_lshl_b32 s{24+j}, s22, 11""")
    a("""s_waitcnt lgkmcnt(0)
    s_mov_b32 s8, s4
    s_mov_b32 s9, s5""")
    a(f"s_mov_b32 s6, {WS_SIZE}\ns_mov_b32 s7, 0x20000")
    def ldq(j):
        a(f"buffer_load_dwordx4 v[{Q_+8*j}:{Q_+8*j+3}], v1, s[4:7], s{24+j} offen")
        a(f"buffer_load_dwordx4 v[{Q_+8*j+4}:{Q_+8*j+7}], v1, s[4:7], s{24+j} offen offset:1024")
    def ldkv(b):
        L = [f"buffer_load_dwordx4 v[{KV_+16*b+4*f}:{KV_+16*b+4*f+3}], v1, s[8:11], s21 offen offset:{1024*f}" for f in range(4)]
        L.append("s_add_u32 s21, s21, 4096")
        return L
    ldq(0)
    for x in ldkv(0): a(x)
    for j in range(1, 4): ldq(j)
    for b in (1, 2):
        for x in ldkv(b): a(x)
    for r in range(64): a(f"v_mov_b32 v{O_+r}, 0")
    a("s_mov_b32 s23, 4")
    a("s_waitcnt vmcnt(8)")
    def Smf(t):
        kb = KV_ + 16 * ((t // 4) % 4); q = Q_ + 8 * (t % 4); d = S_ + 16 * (t & 1)
        return [mfma32(d, kb, q, None), mfma32(d, kb + 4, q + 4, d)]
    def PVmf(t):
        vb = KV_ + 16 * ((t // 4) % 4) + 8; o = O_ + 16 * (t % 4); p = P_ + 8 * (t & 1)
        return [mfma32(o, vb, p, o), mfma32(o, vb + 4, p + 4, o)]
    def step(t, pv=True):
        tt = t % 16
        if tt % 4 == 3: a("s_waitcnt vmcnt(8)")
        ms = Smf(t + 1) + (PVmf(t - 1) if pv else [])
        ld = ldkv(((tt - 1) // 4 + 3) % 4) if tt % 4 == 1 else []
        s = S_ + 16 * (t & 1); p = P_ + 8 * (t & 1)
        for g in range(4):
            if g < len(ms): a(ms[g])
            if g == 3 or (g == 2 and False):
                pass
            for j in range(4): a(f"v_exp_f32 v{s+4*g+j}, v{s+4*g+j}")
            if g >= 1:
                a(f"v_cvt_pk_bf16_f32 v{p+2*g-2}, v{s+4*g-4}, v{s+4*g-3}")
                a(f"v_cvt_pk_bf16_f32 v{p+2*g-1}, v{s+4*g-2}, v{s+4*g-1}")
            if ld and g < 3:
                a(ld[g])
        if ld: a(ld[3]); a(ld[4])
        a(f"v_cvt_pk_bf16_f32 v{p+6}, v{s+12}, v{s+13}")
        a(f"v_cvt_pk_bf16_f32 v{p+7}, v{s+14}, v{s+15}")
    for m in Smf(0): a(m)
    step(0, pv=False)
    a.raw(".p2align 3")
    a.label("K2_LOOP")
    for t in range(1, 16): step(t)
    a("s_sub_u32 s23, s23, 1\ns_cmp_eq_u32 s23, 0\ns_cbranch_scc1 K2_TAIL")
    step(16)
    a("s_branch K2_LOOP")
    a.label("K2_TAIL")
    for m in PVmf(15): a(m)
    a("s_nop 7")
    for j in range(3):
        a(f"""s_add_u32 s22, s19, {j+1}
        s_and_b32 s22, s22, 3
        s_mul_i32 s22, s22, 12288
        v_add_u32 v3, s22, v1""")
        for rq in range(4):
            a(f"ds_write_b128 v3, v[{O_+16*j+4*rq}:{O_+16*j+4*rq+3}] offset:{j*4096 + rq*1024}")
    a("""s_mul_i32 s22, s19, 12288
    v_add_u32 v3, s22, v1
    s_waitcnt lgkmcnt(0)
    s_barrier""")
    for j in range(3):
        for rq in range(4):
            a(f"ds_read_b128 v[{O_+16*j+4*rq}:{O_+16*j+4*rq+3}], v3 offset:{j*4096 + rq*1024}")
    F = O_ + 48
    for j in range(3):
        a(f"s_waitcnt lgkmcnt({8-4*j})")
        for i in range(8):
            a(f"v_pk_add_f32 v[{F+2*i}:{F+2*i+1}], v[{F+2*i}:{F+2*i+1}], v[{O_+16*j+2*i}:{O_+16*j+2*i+1}]")
    a(f"""v_mov_b32 v4, v{F+12}
    v_mov_b32 v5, v{F+12}
    v_add_f32 v6, |v{F}|, |v{F+1}|""")
    for i in range(2, 16): a(f"v_add_f32 v6, v6, |v{F+i}|")
    a(f"""v_permlane32_swap_b32 v4, v5
    s_mov_b32 s22, 0x2b800000
    s_mov_b32 s30, 0x5f800000
    s_mov_b32 s31, 0x7f800000
    v_cmp_lt_f32 s[32:33], s22, v5
    v_cmp_gt_f32 s[34:35], s30, v5
    v_cmp_gt_f32 vcc, s31, v6
    s_and_b64 s[32:33], s[32:33], s[34:35]
    s_and_b64 s[32:33], s[32:33], vcc
    s_cmp_eq_u64 s[32:33], -1
    s_cbranch_scc0 K2_FALLBACK""")
    a.label("K2_FINISH", reset=True)
    a(f"""v_rcp_f32 v5, v5
    s_lshl_b32 s22, s17, 2
    s_add_u32 s22, s22, s19
    s_lshl_b32 s22, s22, 5
    s_add_u32 s22, s22, s16
    s_lshl_b32 s22, s22, 10
    s_add_u32 s22, s22, {WS_OA}
    v_and_b32 v6, 15, v2
    v_lshlrev_b32 v6, 4, v6
    v_lshrrev_b32 v7, 5, v2
    v_lshl_add_u32 v6, v7, 8, v6
    v_bfe_u32 v7, v2, 4, 1
    v_lshl_add_u32 v6, v7, 14, v6""")
    for i in range(16): a(f"v_mul_f32 v{F+i}, v{F+i}, v5")
    for i in range(8): a(f"v_cvt_pk_bf16_f32 v{P_+i}, v{F+2*i}, v{F+2*i+1}")
    a(f"""s_mov_b32 exec_lo, 0
    v_mov_b32 v{P_+6}, 0
    v_mov_b32 v{P_+7}, 0
    s_mov_b32 exec_lo, -1
    buffer_store_dwordx4 v[{P_}:{P_+3}], v6, s[4:7], s22 offen
    buffer_store_dwordx4 v[{P_+4}:{P_+7}], v6, s[4:7], s22 offen offset:512
    s_endpgm""")
    a.label("K2_FALLBACK", reset=True)
    q = Q_ + 24
    a(f"""s_mov_b32 exec_lo, 0
    v_mov_b32 v{q+6}, 0
    s_mov_b32 exec_lo, -1
    s_lshl_b32 s21, s16, 18
    s_add_u32 s21, s21, {WS_KV}
    s_mov_b32 s23, 64
    v_mov_b32 v8, 0xff800000""")
    for i in range(16): a(f"v_mov_b32 v{F+i}, 0")
    a.label("K2_FB_LOOP", reset=True)
    for f in range(4):
        a(f"buffer_load_dwordx4 v[{KV_+4*f}:{KV_+4*f+3}], v1, s[4:7], s21 offen offset:{1024*f}")
    a("s_add_u32 s21, s21, 4096\ns_waitcnt vmcnt(0)")
    a(mfma32(S_, KV_, q, None)); a(mfma32(S_, KV_ + 4, q + 4, S_))
    a(f"v_max3_f32 v9, v{S_}, v{S_+1}, v8")
    for i in range(1, 8): a(f"v_max3_f32 v9, v{S_+2*i}, v{S_+2*i+1}, v9")
    a("""v_mov_b32 v10, v9
    v_permlane32_swap_b32 v9, v10
    v_max_f32 v9, v9, v10
    v_sub_f32 v10, v8, v9
    v_exp_f32 v10, v10
    v_mov_b32 v8, v9""")
    for i in range(16): a(f"v_sub_f32 v{S_+i}, v{S_+i}, v9")
    for i in range(16): a(f"v_exp_f32 v{S_+i}, v{S_+i}")
    for i in range(16): a(f"v_mul_f32 v{F+i}, v{F+i}, v10")
    for i in range(8): a(f"v_cvt_pk_bf16_f32 v{P_+i}, v{S_+2*i}, v{S_+2*i+1}")
    a(mfma32(F, KV_ + 8, P_, F)); a(mfma32(F, KV_ + 12, P_ + 4, F))
    a("""s_sub_u32 s23, s23, 1
    s_cmp_lg_u32 s23, 0
    s_nop 15
    s_cbranch_scc1 K2_FB_LOOP""")
    a(f"""v_mov_b32 v4, v{F+12}
    v_mov_b32 v5, v{F+12}
    v_permlane32_swap_b32 v4, v5
    s_nop 1
    s_branch K2_FINISH""")
    a.label("K2_KVRED", reset=True)
    a(f"""s_lshl_b32 s20, s16, 17
    s_lshl_b32 s21, s17, 8
    s_add_u32 s20, s20, s21
    s_add_u32 s20, s20, {WS_KVP}
    v_lshlrev_b32 v3, 2, v2
    s_waitcnt lgkmcnt(0)
    s_mov_b32 s6, {WS_SIZE}
    s_mov_b32 s7, 0x20000""")
    for p in range(32):
        a(f"buffer_load_dword v{32+p}, v3, s[4:7], s20 offen\ns_add_u32 s20, s20, 4096")
    a(f"""s_and_b32 s21, s17, 3
    s_lshl_b32 s21, s21, 4
    v_lshrrev_b32 v4, 2, v2
    v_add_u32 v4, s21, v4
    s_lshr_b32 s21, s17, 2
    s_lshl_b32 s21, s21, 2
    v_and_b32 v5, 3, v2
    v_add_u32 v5, s21, v5
    v_and_b32 v6, 31, v4           ; e
    v_lshrrev_b32 v4, 5, v4        ; h'
    v_lshrrev_b32 v7, 3, v5        ; s
    v_lshl_add_u32 v4, v7, 1, v4   ; g
    v_and_b32 v5, 7, v5            ; j
    v_lshlrev_b32 v5, 1, v5
    v_lshl_add_u32 v5, v4, 8, v5   ; g*256 + j*2
    v_add_u32 v7, -16, v6          ; x = e-16
    v_mul_u32_u24 v8, 43, v7
    v_lshrrev_b32 v8, 7, v8
    v_add3_u32 v7, v7, v8, 64      ; i + 64 (T=1 -> +1024 bytes = 64*16)
    v_lshlrev_b32 v8, 2, v6
    v_add_u32 v8, -45, v8          ; 4(e-28)+3+64
    v_cmp_lt_u32 vcc, 27, v6
    v_cndmask_b32 v7, v7, v8, vcc
    v_cmp_gt_u32 vcc, 16, v6
    v_cndmask_b32 v7, v7, v6, vcc
    v_lshl_add_u32 v5, v7, 4, v5
    s_lshl_b32 s21, s16, 11
    s_add_u32 s21, s21, {WS_KVF}""")
    n = 32
    a("s_waitcnt vmcnt(0)")
    while n > 1:
        n //= 2
        for i in range(n): a(f"v_add_f32 v{32+i}, v{32+i}, v{32+n+i}")
    a("""v_cvt_pk_bf16_f32 v32, v32, v32
    buffer_store_short v32, v5, s[4:7], s21 offen""")
    a.label("K2_END")
    a("s_endpgm")
    a.raw(kd("attn_kernel"))

PAIR = 29696
KVL = 4 * PAIR
def k3(a):
    kstart(a, "proj_kernel")
    a("""s_cmp_ge_u32 s2, 256
    s_cbranch_scc1 K3_END
    s_load_dwordx2 s[4:5], s[0:1], 64
    s_load_dwordx2 s[8:9], s[0:1], 16
    s_load_dwordx2 s[32:33], s[0:1], 40
    s_load_dwordx2 s[12:13], s[0:1], 48
    v_lshrrev_b32 v1, 6, v0
    v_and_b32 v2, 63, v0
    s_and_b32 s40, s2, 7
    s_lshr_b32 s41, s2, 3
    v_readfirstlane_b32 s19, v1
    s_lshr_b32 s16, s40, 2          ; branch
    s_and_b32 s17, s40, 3
    s_lshl_b32 s17, s17, 3
    s_lshr_b32 s42, s41, 2
    s_add_u32 s17, s17, s42
    s_and_b32 s18, s41, 3           ; cb
    v_lshlrev_b32 v1, 4, v2
    s_cmp_ge_u32 s19, 4
    s_cbranch_scc1 K3_LOADER""")
    OF = 64
    a(f"""s_lshl_b32 s20, s17, 2
    s_add_u32 s20, s20, s19
    s_lshl_b32 s20, s20, 14
    s_cmp_eq_u32 s16, 1
    s_cselect_b32 s21, 0, {WS_OA - WS_PQ}
    s_add_u32 s20, s20, s21
    s_add_u32 s20, s20, {WS_PQ}
    s_waitcnt lgkmcnt(0)
    s_mov_b32 s6, {WS_SIZE}
    s_mov_b32 s7, 0x20000
    s_mov_b32 s14, 3670016
    s_mov_b32 s15, 0x20000""")
    for h in range(16):
        a(f"buffer_load_dwordx4 v[{OF+4*h}:{OF+4*h+3}], v1, s[4:7], s20 offen offset:{(h%4)*1024}")
        if h % 4 == 3 and h < 15: a("s_add_u32 s20, s20, 4096")
    a("""v_lshrrev_b32 v3, 4, v2          ; g
    v_bfe_u32 v4, v2, 2, 2           ; r
    v_and_b32 v5, 3, v2              ; c
    v_lshrrev_b32 v6, 1, v3
    v_lshlrev_b32 v6, 4, v6
    v_and_b32 v7, 1, v3
    v_lshl_add_u32 v6, v7, 2, v6
    v_add_u32 v6, v6, v4
    v_add_u32 v7, 8, v6
    s_cmp_eq_u32 s16, 1
    s_cbranch_scc0 K3_ROWS
    v_lshl_add_u32 v6, v3, 2, v4
    v_mul_u32_u24 v7, 3, v3
    v_add3_u32 v7, v7, v4, 16""")
    a.label("K3_ROWS", reset=True)
    for rd in range(2):
        a(f"""v_bfe_u32 v8, v{6+rd}, 2, 1
        v_lshlrev_b32 v8, 5, v8
        v_lshl_add_u32 v8, v5, 3, v8
        v_lshl_add_u32 v{10+rd}, v{6+rd}, 6, v8""")
    AD = 128
    a("s_and_b32 s21, s18, 1")
    for T in range(7):
        a(f"""s_add_u32 s22, s21, {T}
        s_and_b32 s23, s22, 1
        s_lshl_b32 s23, s23, 5
        s_lshr_b32 s22, s22, 1
        s_mul_i32 s22, s22, {PAIR}""")
        for rd in range(2):
            a(f"""v_xor_b32 v8, s23, v{10+rd}
            v_add_u32 v{AD+4*T+rd}, s22, v8
            v_xor_b32 v{AD+4*T+2+rd}, 32, v{AD+4*T+rd}""")
    a("s_cmp_eq_u32 s16, 1\ns_cbranch_scc0 K3_MAIN_A")
    a(f"s_barrier\ns_mov_b32 s22, {EPS}\nv_add_u32 v9, {KVL}, v1")
    KF = 160; D = 16
    def kvread(h):
        b = KF + 8 * (h % 4)
        a(f"ds_read_b128 v[{b}:{b+3}], v9 offset:{h*2048}")
        a(f"ds_read_b128 v[{b+4}:{b+7}], v9 offset:{h*2048+1024}")
    for h in range(3): kvread(h)
    a("s_waitcnt vmcnt(0)")
    def fin(h):
        d = D + 8 * (h % 4); o = OF + 4 * h
        a(f"v_add_f32 v{d+7}, s22, v{d+7}")
        a(f"v_rcp_f32 v{d+7}, v{d+7}")
        for i in range(7): a(f"v_mul_f32 v{d+i}, v{d+i}, v{d+7}")
        a(f"v_cvt_pk_bf16_f32 v{o}, v{d}, v{d+1}\nv_cvt_pk_bf16_f32 v{o+1}, v{d+2}, v{d+3}\nv_cvt_pk_bf16_f32 v{o+2}, v{d+4}, v{d+5}\nv_cvt_pk_bf16_f32 v{o+3}, v{d+6}, 0")
    for h in range(16):
        if h + 3 < 16: kvread(h + 3)
        a(f"s_waitcnt lgkmcnt({2*min(3, 15-h)})")
        b = KF + 8 * (h % 4); d = D + 8 * (h % 4)
        a(mfma16(d, b, OF + 4 * h, None)); a(mfma16(d + 4, b + 4, OF + 4 * h, None))
        if h >= 1: fin(h - 1)
    fin(15)
    a("s_branch K3_MAIN")
    a.label("K3_MAIN_A", reset=True)
    a("s_barrier\ns_waitcnt vmcnt(0)")
    a.label("K3_MAIN", reset=True)
    a("s_barrier")
    AC = 192; WB = 160
    seq = [(h, T) for h in range(16) for T in range(7)]
    def wread(i):
        h, T = seq[i]; b = WB + 4 * (i % 8)
        for rd in range(2):
            a(f"ds_read_b64_tr_b16 v[{b+2*rd}:{b+2*rd+1}], v{AD+4*T+2*(h&1)+rd} offset:{h*1792}")
    DEPTH = 6
    for i in range(DEPTH): wread(i)
    for i, (h, T) in enumerate(seq):
        if i + DEPTH < len(seq): wread(i + DEPTH)
        a(f"s_waitcnt lgkmcnt({2*min(DEPTH, len(seq)-1-i)})")
        a(mfma16(AC + 4 * T, WB + 4 * (i % 8), OF + 4 * h, AC + 4 * T if h else None))
    a(f"""s_lshl_b32 s20, s17, 2
    s_add_u32 s20, s20, s19
    s_mul_i32 s20, s20, 28672
    s_mul_i32 s21, s16, 896
    s_add_u32 s20, s20, s21
    s_mul_i32 s21, s18, 224
    s_add_u32 s20, s20, s21
    v_and_b32 v4, 15, v2
    v_mul_u32_u24 v4, 1792, v4
    v_lshl_add_u32 v4, v3, 3, v4""")
    for T in range(7):
        a(f"v_cvt_pk_bf16_f32 v{16+2*T}, v{AC+4*T}, v{AC+4*T+1}\nv_cvt_pk_bf16_f32 v{17+2*T}, v{AC+4*T+2}, v{AC+4*T+3}")
        a(f"buffer_store_dwordx2 v[{16+2*T}:{17+2*T}], v4, s[12:15], s20 offen offset:{32*T}")
    a("s_endpgm")
    a.label("K3_LOADER", reset=True)
    a(f"""s_sub_u32 s21, s19, 4
    v_lshrrev_b32 v3, 2, v2
    v_and_b32 v4, 3, v2
    v_bfe_u32 v5, v2, 4, 1
    v_lshlrev_b32 v5, 1, v5
    v_xor_b32 v4, v4, v5
    v_mul_u32_u24 v3, 896, v3
    v_lshl_add_u32 v10, v4, 4, v3
    s_mul_i32 s22, s18, 224
    s_andn2_b32 s22, s22, 63
    s_lshl_b32 s23, s21, 6
    s_add_u32 s22, s22, s23
    s_mul_i32 s23, s21, {PAIR}
    s_lshl_b32 s24, s21, 13
    s_add_u32 s25, s24, {KVL}
    s_add_u32 s24, s24, {WS_KVF}
    s_waitcnt lgkmcnt(0)
    s_mov_b32 s6, {WS_SIZE}
    s_mov_b32 s7, 0x20000
    s_cmp_eq_u32 s16, 1
    s_cselect_b32 s8, s32, s8
    s_cselect_b32 s9, s33, s9
    s_mov_b32 s10, 401408
    s_mov_b32 s11, 0x20000
    s_cbranch_scc0 K3_LD_W""")
    for i in range(8):
        a(f"s_add_u32 m0, s25, {i*1024}\ns_add_u32 s26, s24, {i*1024}\nbuffer_load_dwordx4 v1, s[4:7], s26 offen lds")
    a.label("K3_LD_W", reset=True)
    for i in range(29):
        a(f"s_add_u32 m0, s23, {i*1024}\ns_add_u32 s26, s22, {i*14336}\nbuffer_load_dwordx4 v10, s[8:11], s26 offen lds")
    a("s_waitcnt vmcnt(29)\ns_barrier\ns_waitcnt vmcnt(0)\ns_barrier")
    a.label("K3_END")
    a("s_endpgm")
    a.raw(kd("proj_kernel"))

def build():
    a = Asm()
    a.raw("""; concat_heads softmax MHA + linear attention block, three launches
; @launch kernel=qkv_kernel grid=(256,1,1) block=(512,1,1) lds=163840
; @launch kernel=attn_kernel grid=(256,1,1) block=(512,1,1) lds=49152
; @launch kernel=proj_kernel grid=(256,1,1) block=(512,1,1) lds=151552
.amdgcn_target "amdgcn-amd-amdhsa--gfx950"
.text""")
    k1(a); k2(a); k3(a)
    return a.text()

if __name__ == "__main__":
    out = sys.argv[1] if len(sys.argv) > 1 else f"cdna_kernels/{NAME}.s"
    open(out, "w").write(build())
```
